```python
import torch

def _softmax(x, axis=-1):
    return torch.softmax(x, dim=axis)
def _gelu(x):
    return torch.nn.functional.gelu(x, approximate="tanh")
def _silu(x):
    return torch.nn.functional.silu(x)
def _sigmoid(x):
    return torch.sigmoid(x)
def _layernorm(x, axis=-1, eps=1e-5):
    m = x.mean(dim=axis, keepdim=True)
    v = x.var(dim=axis, keepdim=True, unbiased=False)
    return (x - m) / torch.sqrt(v + eps)
def _scatter_add(tgt, idx, src, axis=0):
    return tgt.clone().index_add_(axis, idx, src)
def _segment_sum(src, seg, n):
    out = torch.zeros((n,) + src.shape[1:], dtype=src.dtype)
    return out.index_add_(0, seg, src)
def _pad(x, pw):
    flat = tuple(v for pair in reversed(pw) for v in pair)
    return torch.nn.functional.pad(x, flat)

kernel_name = 'standalone__rmsnorm__sampling'

def setup_inputs():

    _w = (lambda a: (lambda t: t.to(torch.bfloat16) if t.is_floating_point() else t)(torch.as_tensor(a)))
    B, S, D = 1024, 16, 448
    return {
        "x": _w((lambda *s: torch.randn(*s, dtype=torch.bfloat16) * 0.05)(B, S, D)),
        "g": _w((lambda *s: torch.randn(*s, dtype=torch.bfloat16) * 0.05)(D) + 1.0),
    }

def reference(x, g):
    rms = torch.sqrt((x * x).mean(axis=-1, keepdims=True) + 1e-6)
    return x / rms * g
```

```python
import sys

HEADER = """; Kernarg layout for this problem (40 bytes, ptrs only, base s[0:1]):
; @launch grid=({grid},1,1) block=({block},1,1) lds={lds}
.amdgcn_target "amdgcn-amd-amdhsa--gfx950"
.text
.globl standalone__rmsnorm__sampling_kernel
.p2align 8
.type standalone__rmsnorm__sampling_kernel,@function
standalone__rmsnorm__sampling_kernel:
"""
FOOTER = """.section .rodata,"a"
.p2align 6
.amdhsa_kernel standalone__rmsnorm__sampling_kernel
  .amdhsa_next_free_vgpr {vgpr}
  .amdhsa_next_free_sgpr {sgpr}
  .amdhsa_accum_offset {accum}
  .amdhsa_group_segment_fixed_size 0
  .amdhsa_kernarg_size 40
  .amdhsa_user_sgpr_count 2
  .amdhsa_user_sgpr_kernarg_segment_ptr 1
  .amdhsa_system_sgpr_workgroup_id_x 1
  .amdhsa_float_denorm_mode_32 3
.end_amdhsa_kernel
"""

def gen(block=256, mimic=True, ldflag="", stflag="", gflag=""):
    rows_per_wg = block // 8
    nwg = 16384 // rows_per_wg
    L = []
    A = L.append
    X = 8
    G = 36
    XF = 64
    GF = 120
    A("    s_load_dwordx4 s[4:7], s[0:1], 0")
    A("    s_load_dwordx2 s[8:9], s[0:1], 16")
    A(f"    s_cmp_ge_u32 s2, {nwg}")
    A("    s_cbranch_scc1 L_end")
    A("    v_and_b32 v2, 7, v0")
    A("    v_lshlrev_b32 v2, 4, v2")
    A("    v_lshrrev_b32 v1, 3, v0")
    A(f"    s_mul_i32 s3, s2, {rows_per_wg*896}")
    A("    v_mul_u32_u24 v1, 896, v1")
    A("    v_add3_u32 v1, v1, v2, s3")
    A("    s_waitcnt lgkmcnt(0)")
    for k in range(7):
        A(f"    global_load_dwordx4 v[{X+4*k}:{X+4*k+3}], v1, s[4:5] offset:{128*k} {ldflag}")
    for k in range(7):
        A(f"    global_load_dwordx4 v[{G+4*k}:{G+4*k+3}], v2, s[6:7] offset:{128*k} {gflag}")
    A("    v_mov_b32 v4, 0")
    A("    v_mov_b32 v5, 0")
    A("    s_mov_b32 s10, 0xffff0000")
    for k in range(7):
        A(f"    s_waitcnt vmcnt({13-k})")
        for d in range(4):
            r = X + 4*k + d
            A(f"    v_dot2c_f32_bf16 v{4 + (d & 1)}, v{r}, v{r}")
        for d in range(4):
            r = X + 4*k + d
            f = XF + 2*(4*k + d)
            A(f"    v_lshlrev_b32 v{f}, 16, v{r}")
            A(f"    v_and_b32 v{f+1}, s10, v{r}")
    A("    v_add_f32 v4, v4, v5")
    A("    s_nop 1")
    A("    v_add_f32_dpp v4, v4, v4 quad_perm:[1,0,3,2] row_mask:0xf bank_mask:0xf")
    A("    s_nop 1")
    A("    v_add_f32_dpp v4, v4, v4 quad_perm:[2,3,0,1] row_mask:0xf bank_mask:0xf")
    A("    s_nop 1")
    A("    v_add_f32_dpp v4, v4, v4 row_half_mirror row_mask:0xf bank_mask:0xf")
    A("    v_mul_f32 v4, 0x3b124925, v4")
    if mimic:
        A("    v_cvt_pk_bf16_f32 v4, v4, v4")
        A("    v_and_b32 v4, s10, v4")
        A("    v_add_f32 v4, 0x358637bd, v4")
        A("    v_cvt_pk_bf16_f32 v4, v4, v4")
        A("    v_and_b32 v4, s10, v4")
        A("    v_sqrt_f32 v4, v4")
        A("    s_nop 0")
        A("    v_cvt_pk_bf16_f32 v4, v4, v4")
        A("    v_and_b32 v4, s10, v4")
        A("    v_rcp_f32 v4, v4")
    else:
        A("    v_add_f32 v4, 0x358637bd, v4")
        A("    v_rsq_f32 v4, v4")
    for k in range(7):
        A(f"    s_waitcnt vmcnt({6-k + k})")
        L.pop()
        A(f"    s_waitcnt vmcnt({6})")
        for d in range(4):
            r = G + 4*k + d
            f = GF + 2*(4*k + d)
            A(f"    v_lshlrev_b32 v{f}, 16, v{r}")
            A(f"    v_and_b32 v{f+1}, s10, v{r}")
        for d in range(4):
            f = XF + 2*(4*k + d)
            A(f"    v_pk_mul_f32 v[{f}:{f+1}], v[{f}:{f+1}], v[4:5] op_sel_hi:[1,0]")
        if mimic:
            for d in range(4):
                f = XF + 2*(4*k + d)
                r = X + 4*k + d
                A(f"    v_cvt_pk_bf16_f32 v{r}, v{f}, v{f+1}")
            for d in range(4):
                f = XF + 2*(4*k + d)
                r = X + 4*k + d
                A(f"    v_lshlrev_b32 v{f}, 16, v{r}")
                A(f"    v_and_b32 v{f+1}, s10, v{r}")
        for d in range(4):
            f = XF + 2*(4*k + d)
            gf = GF + 2*(4*k + d)
            A(f"    v_pk_mul_f32 v[{f}:{f+1}], v[{f}:{f+1}], v[{gf}:{gf+1}]")
        for d in range(4):
            f = XF + 2*(4*k + d)
            r = X + 4*k + d
            A(f"    v_cvt_pk_bf16_f32 v{r}, v{f}, v{f+1}")
        A(f"    global_store_dwordx4 v1, v[{X+4*k}:{X+4*k+3}], s[8:9] offset:{128*k} {stflag}")
    A("L_end:")
    A("    s_endpgm")
    vg = 176
    return HEADER.format(grid=nwg, block=block, lds=0) + "\n".join(L) + "\n" + FOOTER.format(vgpr=vg, sgpr=16, accum=vg)

if __name__ == "__main__":
    import argparse
    p = argparse.ArgumentParser()
    p.add_argument("-o", required=True)
    p.add_argument("--block", type=int, default=256)
    p.add_argument("--nomimic", action="store_true")
    p.add_argument("--ld", default="")
    p.add_argument("--st", default="")
    a = p.parse_args()
    open(a.o, "w").write(gen(a.block, not a.nomimic, a.ld, a.st))
```

```python
import sys
from gen1 import HEADER, FOOTER

def gen(block=256, U=1, mode="fast", ldflag="", stflag="nt sc1", gmode="lds", barrier=None, stamp=False, align=True,
        prio=None, gpos="first", st2=None, thresh=0.5, touch=None):
    wpb = block // 64
    rows_per_wg = wpb * 8 * U
    nwg = 16384 // rows_per_wg
    L = []
    A = L.append
    nv = 8
    GF = nv; nv += 56
    XF = []
    for u in range(U):
        XF.append(nv); nv += 56
    X = []
    for u in range(U):
        X.append(nv); nv += 28
    G = nv; nv += (28 if gmode == "direct" else 12)
    XO = []
    for u in range(U):
        XO.append(nv); nv += 1
    ACC = []
    for u in range(U):
        nv += nv & 1
        ACC.append(nv); nv += 2
    ns = [0]; names = []
    def ST(name):
        if stamp and ns[0] < 13:
            A(f"    s_memrealtime s[{20+2*ns[0]}:{21+2*ns[0]}]")
            ns[0] += 1
            names.append(name)
    ST("start")
    A("    s_load_dwordx4 s[4:7], s[0:1], 0")
    A("    s_load_dwordx2 s[8:9], s[0:1], 16")
    if stamp:
        A("    s_load_dwordx2 s[12:13], s[0:1], 32")
    A(f"    s_cmp_ge_u32 s2, {nwg}")
    A("    s_cbranch_scc1 L_end")
    A("    v_and_b32 v2, 7, v0")
    A("    v_lshlrev_b32 v2, 4, v2")
    A("    v_lshrrev_b32 v1, 3, v0")
    A(f"    s_mul_i32 s3, s2, {rows_per_wg*896}")
    A("    v_mul_u32_u24 v1, 896, v1")
    A(f"    v_add3_u32 v{XO[0]}, v1, v2, s3")
    for u in range(1, U):
        A(f"    v_add_u32 v{XO[u]}, {u*wpb*8*896}, v{XO[0]}")
    if gmode == "lds":
        A("    v_and_b32 v3, 63, v0")
        A("    v_min_u32 v3, 55, v3")
        A("    v_lshlrev_b32 v3, 4, v3")
    A("    s_mov_b32 s10, 0xffff0000")
    for u in range(U):
        A(f"    v_mov_b32 v{ACC[u]}, 0")
        A(f"    v_mov_b32 v{ACC[u]+1}, 0")
    A("    s_waitcnt lgkmcnt(0)")
    ST("karg")
    q = []
    def LOADX(u):
        for k in range(7):
            r = X[u] + 4*k
            A(f"    global_load_dwordx4 v[{r}:{r+3}], v{XO[u]}, s[4:5] offset:{128*k} {ldflag}")
            q.append(("x", u, k))
    def LOADG():
        if gmode == "direct":
            for k in range(7):
                A(f"    global_load_dwordx4 v[{G+4*k}:{G+4*k+3}], v2, s[6:7] offset:{128*k}")
                q.append(("g", k))
        else:
            A(f"    global_load_dwordx4 v[{G}:{G+3}], v3, s[6:7]")
            q.append(("g", 0))
    def WAIT(tag):
        if tag not in q: return
        n = len(q) - 1 - q.index(tag)
        A(f"    s_waitcnt vmcnt({min(n,63)})")
        del q[:q.index(tag)+1]
    def PREPG():
        if gmode == "direct":
            for k in range(7):
                WAIT(("g", k))
                for d in range(4):
                    A(f"    v_lshlrev_b32 v{GF+8*k+2*d}, 16, v{G+4*k+d}")
                    A(f"    v_and_b32 v{GF+8*k+2*d+1}, s10, v{G+4*k+d}")
        else:
            WAIT(("g", 0))
            for d in range(4):
                A(f"    v_lshlrev_b32 v{G+4+2*d}, 16, v{G+d}")
                A(f"    v_and_b32 v{G+4+2*d+1}, s10, v{G+d}")
            A("    v_lshlrev_b32 v3, 1, v3")
            A("    v_lshlrev_b32 v2, 1, v2")
            A(f"    ds_write_b128 v3, v[{G+4}:{G+7}]")
            A(f"    ds_write_b128 v3, v[{G+8}:{G+11}] offset:16")
            A("    s_waitcnt lgkmcnt(0)")
            for k in range(7):
                A(f"    ds_read_b128 v[{GF+8*k}:{GF+8*k+3}], v2 offset:{256*k}")
                A(f"    ds_read_b128 v[{GF+8*k+4}:{GF+8*k+7}], v2 offset:{256*k+16}")
    if gpos == "first": LOADG()
    for u in range(U): LOADX(u)
    if gpos == "last": LOADG()
    if touch is not None:
        A("    s_mov_b64 exec, 1")
        A(f"    global_load_dword v6, v{XO[0]}, s[8:9] {touch}")
        A("    s_mov_b64 exec, -1")
        q.append(("t",))
    ST("issued")
    if barrier == "issue": A("    s_barrier")
    if prio is not None: A(f"    s_setprio {prio}")
    premul = (mode in ("fast", "fastrow") and gpos == "first")
    if gpos == "first": PREPG()
    first = True
    tails = []
    for u in range(U):
        for k in range(7):
            WAIT(("x", u, k))
            if k == 6 and u == U-1: ST("last")
            for d in range(4):
                r = X[u] + 4*k + d
                A(f"    v_dot2c_f32_bf16 v{ACC[u] + (d & 1)}, v{r}, v{r}")
            for d in range(4):
                r = X[u] + 4*k + d
                f = XF[u] + 8*k + 2*d
                A(f"    v_lshlrev_b32 v{f}, 16, v{r}")
                A(f"    v_and_b32 v{f+1}, s10, v{r}")
            if premul:
                if first and gmode == "lds":
                    A("    s_waitcnt lgkmcnt(0)")
                    first = False
                if k < 6:
                    for d in range(4):
                        f = XF[u] + 8*k + 2*d; gf = GF + 8*k + 2*d
                        A(f"    v_pk_mul_f32 v[{f}:{f+1}], v[{f}:{f+1}], v[{gf}:{gf+1}]")
        filler = []
        if premul:
            for d in range(4):
                f = XF[u] + 48 + 2*d; gf = GF + 48 + 2*d
                filler.append(f"    v_pk_mul_f32 v[{f}:{f+1}], v[{f}:{f+1}], v[{gf}:{gf+1}]")
        def NOP(n):
            while n > 0 and filler:
                A(filler.pop(0)); n -= 1
            if n > 0: A(f"    s_nop {n-1}")
        a = ACC[u]
        A(f"    v_add_f32 v{a}, v{a}, v{a+1}")
        NOP(2)
        A(f"    v_add_f32_dpp v{a}, v{a}, v{a} quad_perm:[1,0,3,2] row_mask:0xf bank_mask:0xf")
        NOP(2)
        A(f"    v_add_f32_dpp v{a}, v{a}, v{a} quad_perm:[2,3,0,1] row_mask:0xf bank_mask:0xf")
        NOP(2)
        A(f"    v_add_f32_dpp v{a}, v{a}, v{a} row_half_mirror row_mask:0xf bank_mask:0xf")
        while filler: A(filler.pop(0))
        if mode in ("mimic", "rowmimic", "fastrow"):
            A(f"    v_mul_f32 v{a}, 0x3b124925, v{a}")
            A(f"    v_cvt_pk_bf16_f32 v{a}, v{a}, v{a}")
            A(f"    v_and_b32 v{a}, s10, v{a}")
            A(f"    v_add_f32 v{a}, 0x358637bd, v{a}")
            A(f"    v_cvt_pk_bf16_f32 v{a}, v{a}, v{a}")
            A(f"    v_and_b32 v{a}, s10, v{a}")
            A(f"    v_sqrt_f32 v{a}, v{a}")
            A("    s_nop 0")
            A(f"    v_cvt_pk_bf16_f32 v{a}, v{a}, v{a}")
            A(f"    v_and_b32 v{a}, s10, v{a}")
            A(f"    v_rcp_f32 v{a}, v{a}")
        else:
            A(f"    v_mov_b32 v{a+1}, 0x358637bd")
            A(f"    v_fmac_f32 v{a+1}, 0x3b124925, v{a}")
            A(f"    v_rsq_f32 v{a}, v{a+1}")
        A("    s_nop 0")
        if gpos == "last" and u == 0:
            PREPG()
            if gmode == "lds": A("    s_waitcnt lgkmcnt(0)")
        stores = []
        for k in range(7):
            for d in range(4):
                f = XF[u] + 8*k + 2*d
                A(f"    v_pk_mul_f32 v[{f}:{f+1}], v[{f}:{f+1}], v[{a}:{a+1}] op_sel_hi:[1,0]")
            if mode == "mimic":
                for d in range(4):
                    f = XF[u] + 8*k + 2*d; r = X[u] + 4*k + d
                    A(f"    v_cvt_pk_bf16_f32 v{r}, v{f}, v{f+1}")
                for d in range(4):
                    f = XF[u] + 8*k + 2*d; r = X[u] + 4*k + d
                    A(f"    v_lshlrev_b32 v{f}, 16, v{r}")
                    A(f"    v_and_b32 v{f+1}, s10, v{r}")
            if not premul:
                for d in range(4):
                    f = XF[u] + 8*k + 2*d; gf = GF + 8*k + 2*d
                    A(f"    v_pk_mul_f32 v[{f}:{f+1}], v[{f}:{f+1}], v[{gf}:{gf+1}]")
            for d in range(4):
                f = XF[u] + 8*k + 2*d; r = X[u] + 4*k + d
                A(f"    v_cvt_pk_bf16_f32 v{r}, v{f}, v{f+1}")
            r = X[u] + 4*k
            s = f"    global_store_dwordx4 v{XO[u]}, v[{r}:{r+3}], s[8:9] offset:{128*k} {stflag}"
            if barrier in ("data", "late") or st2 is not None: tails.append(s)
            else:
                A(s); q.append(("s", u, k))
    if barrier == "data": A("    s_barrier")
    if st2 is not None:
        A(f"    s_cmp_ge_u32 s2, {int(thresh*nwg)}")
        A("    s_cbranch_scc1 L_late")
        for s in tails: A(s)
        A("    s_endpgm")
        A("L_late:")
        for s in tails: A(s.replace(" " + stflag, " " + st2) if stflag else s + " " + st2)
    else:
        for s in tails: A(s)
    ST("stiss")
    if stamp:
        A("    s_waitcnt vmcnt(0)")
        A(f"    s_memrealtime s[{20+2*ns[0]}:{21+2*ns[0]}]")
        ns[0] += 1; names.append("done")
        A("    s_getreg_b32 s60, hwreg(HW_REG_XCC_ID)")
        A("    s_getreg_b32 s61, hwreg(HW_REG_HW_ID)")
        A("    s_waitcnt lgkmcnt(0)")
        A("    v_lshrrev_b32 v1, 6, v0")
        A(f"    s_mul_i32 s3, s2, {wpb}")
        A("    v_add_u32 v1, s3, v1")
        A("    v_lshlrev_b32 v1, 6, v1")
        for i in range(14):
            A(f"    v_mov_b32 v{8+i}, s{20+2*i}" if i < ns[0] else f"    v_mov_b32 v{8+i}, 0")
        A("    v_mov_b32 v22, s60")
        A("    v_mov_b32 v23, s61")
        A("    v_and_b32 v2, 63, v0")
        A("    v_cmp_eq_u32 vcc, 0, v2")
        A("    s_and_saveexec_b64 s[14:15], vcc")
        for j in range(4):
            A(f"    global_store_dwordx4 v1, v[{8+4*j}:{11+4*j}], s[12:13] offset:{16*j}")
    A("L_end:")
    A("    s_endpgm")
    vg = (nv + 7) // 8 * 8
    assert vg <= 256 and vg * (block // 256 if block >= 256 else 1) <= 512, vg
    hdr = HEADER.format(grid=nwg, block=block, lds=(1792 if gmode == "lds" else 0))
    if stamp: hdr = "; stamps: " + ",".join(names) + "\n" + hdr
    if align: hdr = hdr.replace(".p2align 8\n.type", ".p2align 12\n.p2align 8\n.type")
    return hdr + "\n".join(L) + "\n" + FOOTER.format(vgpr=vg, sgpr=64 if stamp else 16, accum=vg)

if __name__ == "__main__":
    import argparse
    p = argparse.ArgumentParser()
    p.add_argument("-o", required=True)
    p.add_argument("--block", type=int, default=256)
    p.add_argument("--U", type=int, default=1)
    p.add_argument("--mode", default="fast")
    p.add_argument("--stamp", action="store_true")
    p.add_argument("--ld", default="")
    p.add_argument("--st", default="nt sc1")
    p.add_argument("--g", default="lds")
    p.add_argument("--gpos", default="first")
    p.add_argument("--barrier", default=None)
    p.add_argument("--noalign", action="store_true")
    p.add_argument("--prio", type=int, default=None)
    p.add_argument("--st2", default=None)
    p.add_argument("--thresh", type=float, default=0.5)
    p.add_argument("--touch", default=None)
    a = p.parse_args()
    open(a.o, "w").write(gen(a.block, a.U, a.mode, a.ld, a.st, a.g, a.barrier, a.stamp, not a.noalign, a.prio, a.gpos, a.st2, a.thresh, a.touch))
```
